```python
import torch

def _softmax(x, axis=-1):
    return torch.softmax(x, dim=axis)
def _gelu(x):
    return torch.nn.functional.gelu(x, approximate="tanh")
def _silu(x):
    return torch.nn.functional.silu(x)
def _sigmoid(x):
    return torch.sigmoid(x)
def _layernorm(x, axis=-1, eps=1e-5):
    m = x.mean(dim=axis, keepdim=True)
    v = x.var(dim=axis, keepdim=True, unbiased=False)
    return (x - m) / torch.sqrt(v + eps)
def _scatter_add(tgt, idx, src, axis=0):
    return tgt.clone().index_add_(axis, idx, src)
def _segment_sum(src, seg, n):
    out = torch.zeros((n,) + src.shape[1:], dtype=src.dtype)
    return out.index_add_(0, seg, src)
def _pad(x, pw):
    flat = tuple(v for pair in reversed(pw) for v in pair)
    return torch.nn.functional.pad(x, flat)

kernel_name = 'interleave_layers__sliding_block_cached__dense_activation_gelu__decode'

def setup_inputs():

    _w = (lambda a: (lambda t: t.to(torch.bfloat16) if t.is_floating_point() else t)(torch.as_tensor(a)))
    def _A_setup():
        B, Sq, D = 2, 1, 576
        Hq, Hkv, Sk, Dh = 32, 16, 4096, 128
        assert Hq % Hkv == 0, (Hq, Hkv)
        return {
            "x": _w((lambda *s: torch.randn(*s, dtype=torch.bfloat16) * 0.05)(B, Sq, D)),
            "k_cache": _w((lambda *s: torch.randn(*s, dtype=torch.bfloat16) * 1.6)(B, Hkv, Sk, Dh)),
            "v_cache": _w((lambda *s: torch.randn(*s, dtype=torch.bfloat16) * 0.4)(B, Hkv, Sk, Dh)),
            "wq": _w((lambda *s: torch.randn(*s, dtype=torch.bfloat16) * 1.6)(D, Hq * Dh) * (D ** -0.5)),
            "wo": _w((lambda *s: torch.randn(*s, dtype=torch.bfloat16) * 0.4)(Hq * Dh, D) * ((Hq * Dh) ** -0.5)),
        }
    _A_in = _A_setup()

    def _B_setup():
        B, S, D, F = 2, 1, 576, 4608
        return {
            "x": _w((lambda *s: torch.randn(*s, dtype=torch.bfloat16) * 0.05)(B, S, D)),
            "w1": _w((lambda *s: torch.randn(*s, dtype=torch.bfloat16) * 0.4)(D, F) * (D ** -0.5)),
            "b1": _w((lambda *s: torch.randn(*s, dtype=torch.bfloat16) * 12.8)(F) * 0.01),
            "w2": _w((lambda *s: torch.randn(*s, dtype=torch.bfloat16) * 0.2)(F, D) * (F ** -0.5)),
            "b2": _w((lambda *s: torch.randn(*s, dtype=torch.bfloat16) * 0.8)(D) * 0.01),
        }
    _B_in = _B_setup()

    return {
        "A_x": _A_in["x"],
        "A_k_cache": _A_in["k_cache"],
        "A_v_cache": _A_in["v_cache"],
        "A_wq": _A_in["wq"],
        "A_wo": _A_in["wo"],
        "B_x": _B_in["x"],
        "B_w1": _B_in["w1"],
        "B_b1": _B_in["b1"],
        "B_w2": _B_in["w2"],
        "B_b2": _B_in["b2"],
    }

def reference(A_x, A_k_cache, A_v_cache, A_wq, A_wo, B_x, B_w1, B_b1, B_w2, B_b2):
    def _A_ref(x, k_cache, v_cache, wq, wo):
        B, Sq, D = x.shape
        Hq, Dh = 32, 128
        Hkv, Sk = k_cache.shape[1], k_cache.shape[2]
        W = min(4096, max(256, Sk // 4))
        rep = Hq // Hkv
        q = (lambda x, *d: x.permute(*d))((x @ wq).reshape(B, Sq, Hq, Dh), 0, 2, 1, 3)
        k = (lambda x, n, axis: torch.repeat_interleave(x, n, dim=axis))(k_cache[:, :, Sk - W:, :], rep, axis=1)
        v = (lambda x, n, axis: torch.repeat_interleave(x, n, dim=axis))(v_cache[:, :, Sk - W:, :], rep, axis=1)
        scores = torch.einsum("bhqd,bhkd->bhqk", q, k) * (Dh ** -0.5)
        p = _softmax(scores, axis=-1)
        o = torch.einsum("bhqk,bhkd->bhqd", p, v)
        return (lambda x, *d: x.permute(*d))(o, 0, 2, 1, 3).reshape(B, Sq, Hq * Dh) @ wo

    def _B_ref(x, w1, b1, w2, b2):
        h = torch.einsum("bsd,df->bsf", x, w1) + b1
        h = _gelu(h)
        return torch.einsum("bsf,fd->bsd", h, w2) + b2

    x = A_x
    x = x + _A_ref(_layernorm(x, axis=-1), A_k_cache, A_v_cache, A_wq, A_wo)
    x = x + _B_ref(_layernorm(x, axis=-1), B_w1, B_b1, B_w2, B_b2)
    x = x + _A_ref(_layernorm(x, axis=-1), A_k_cache, A_v_cache, A_wq, A_wo)
    x = x + _B_ref(_layernorm(x, axis=-1), B_w1, B_b1, B_w2, B_b2)
    return x
```

```python
import re

TRANS = ("v_exp_f32", "v_log_f32", "v_rcp_f32", "v_rsq_f32", "v_sqrt_f32", "v_sin_f32", "v_cos_f32")

def regs_of(op, kind):
    op = op.strip()
    op = re.sub(r"^-|^\||\|$|^abs\(|\)$", "", op)
    m = re.fullmatch(kind + r"(\d+)", op)
    if m:
        return {int(m.group(1))}
    m = re.fullmatch(kind + r"\[(\d+):(\d+)\]", op)
    if m:
        return set(range(int(m.group(1)), int(m.group(2)) + 1))
    if kind == "s":
        if op == "vcc":
            return {"vcc"}
        if op == "m0":
            return {"m0"}
    return set()

class Ins:
    def __init__(self, text):
        self.text = text
        t = text.split(";")[0].strip()
        self.is_label = t.endswith(":")
        self.is_dir = t.startswith(".") and not self.is_label or t == ""
        self.mn = ""
        self.ops = []
        if self.is_label or self.is_dir:
            return
        parts = t.split(None, 1)
        self.mn = parts[0]
        rest = parts[1] if len(parts) > 1 else ""
        ops, depth, cur = [], 0, ""
        for ch in rest:
            if ch in "[(":
                depth += 1
            if ch in "])":
                depth -= 1
            if ch == "," and depth == 0:
                ops.append(cur.strip()); cur = ""
            else:
                cur += ch
        if cur.strip():
            ops.append(cur.strip())
        self.mods = ""
        if ops:
            sp = ops[-1].split(None, 1)
            ops[-1] = sp[0]
            self.mods = sp[1] if len(sp) > 1 else ""
        self.ops = ops
        mn = self.mn
        self.mfma = mn.startswith("v_mfma")
        self.valu = mn.startswith("v_") and not self.mfma
        self.trans = any(mn.startswith(x) for x in TRANS)
        self.vmem = mn.startswith("buffer_") or mn.startswith("global_")
        self.ds = mn.startswith("ds_")
        self.salu = mn.startswith("s_")
        self.branch = mn.startswith("s_cbranch") or mn == "s_branch"
        self.dpp = "_dpp" in mn or "quad_perm" in self.mods or "row_" in self.mods
        self.perml = mn.startswith("v_permlane")
        self.rdl = mn.startswith("v_readlane") or mn.startswith("v_readfirstlane")
        self.lds_dma = self.vmem and re.search(r"\blds\b", self.mods) is not None
        V = lambda o: regs_of(o, "v")
        S = lambda o: regs_of(o, "s")
        self.vdef, self.vuse, self.sdef, self.suse = set(), set(), set(), set()
        self.srcc = set(); self.srcab = set(); self.stdata = set()
        if self.mfma:
            self.vdef = V(ops[0]); self.srcab = V(ops[1]) | V(ops[2]); self.srcc = V(ops[3])
            self.vuse = self.srcab | self.srcc
        elif self.valu:
            if mn.startswith("v_cmp") or self.rdl:
                self.sdef = S(ops[0])
                for o in ops[1:]:
                    self.vuse |= V(o); self.suse |= S(o)
            elif self.perml:
                self.vdef = V(ops[0]) | V(ops[1]); self.vuse = set(self.vdef)
            else:
                self.vdef = V(ops[0])
                for o in ops[1:]:
                    self.vuse |= V(o); self.suse |= S(o)
                if mn.startswith("v_fmac") or mn.startswith("v_dot2c") or self.dpp or mn.startswith("v_writelane"):
                    self.vuse |= self.vdef
                if "_co_" in mn:
                    raise Exception("carry ops unsupported in checker")
        elif self.vmem:
            is_load = "_load" in mn
            if is_load and not self.lds_dma:
                self.vdef = V(ops[0]); rest_ops = ops[1:]
            else:
                rest_ops = ops
            for o in rest_ops:
                self.vuse |= V(o); self.suse |= S(o)
            if "_store" in mn and ("x3" in mn or "x4" in mn):
                self.stdata = V(ops[0]) if mn.startswith("buffer_") else V(ops[1])
        elif self.ds:
            if mn.startswith("ds_read") or "permute" in mn or "swizzle" in mn or "_rtn" in mn:
                self.vdef = V(ops[0]); rest_ops = ops[1:]
            else:
                rest_ops = ops
            for o in rest_ops:
                self.vuse |= V(o)
        elif self.salu:
            if ops and not mn.startswith("s_cmp") and not self.branch and not mn.startswith("s_bitcmp") \
               and mn not in ("s_waitcnt", "s_nop", "s_barrier", "s_endpgm", "s_setprio", "s_sleep"):
                self.sdef = S(ops[0])

    def states(self):
        if self.is_label or self.is_dir:
            return 0
        if self.mn == "s_nop":
            return int(self.ops[0], 0) + 1
        return 1

def need(p, c):
    n = 0
    if p.valu:
        if c.mfma and (p.vdef & c.vuse): n = max(n, 2)
        if c.valu and (c.dpp or c.perml) and (p.vdef & c.vuse): n = max(n, 2)
        if c.rdl and (p.vdef & c.vuse): n = max(n, 1)
        if p.trans and (p.vdef & c.vuse): n = max(n, 1)
        if p.sdef:
            cs = set(c.suse)
            if c.valu and c.mn.startswith("v_cndmask") and len(c.ops) == 3: cs.add("vcc")
            if c.valu and (p.sdef & cs): n = max(n, 4 if (c.rdl or c.mn.startswith("v_writelane")) else 2)
            if c.vmem and (p.sdef & cs): n = max(n, 5)
    if p.mfma:
        if c.mfma:
            if p.vdef & c.srcab: n = max(n, 8)
            if (p.vdef & c.srcc) and (p.vdef != c.srcc or p.mn != c.mn): n = max(n, 6)
            if (p.vdef & c.vdef) and p.vdef != c.srcc: n = max(n, 6)
        elif c.valu or c.vmem or c.ds:
            if p.vdef & (c.vuse | c.vdef): n = max(n, 8)
        if c.valu and (p.srcc & c.vdef): n = max(n, 3)
    if p.salu and "m0" in p.sdef and c.lds_dma: n = max(n, 1)
    if p.stdata and (p.stdata & c.vdef): n = max(n, 2)
    return n

def fix_hazards(lines):
    ins = [Ins(l) for l in lines]
    out = []
    for c in ins:
        if not (c.is_label or c.is_dir):
            dist, req = 0, 0
            for p in reversed(out):
                if p.is_label or p.is_dir:
                    continue
                if p.mn in ("s_branch", "s_endpgm"):
                    break
                req = max(req, need(p, c) - dist)
                dist += p.states()
                if dist >= 8:
                    break
            if req > 0:
                out.append(Ins("    s_nop %d" % (req - 1)))
        out.append(c)
    labels = {i.text.split(":")[0].strip(): k for k, i in enumerate(out) if i.is_label}
    for k, b in enumerate(out):
        if b.is_label or b.is_dir or not b.branch:
            continue
        tgt = labels.get(b.ops[0])
        if tgt is None:
            raise Exception("unknown label " + b.ops[0])
        before, d = [], 0
        for p in reversed(out[: k + 1]):
            if p.is_label or p.is_dir: continue
            if p is not b and p.mn in ("s_branch", "s_endpgm"): break
            before.append((p, d)); d += p.states()
            if d >= 9: break
        da = 0
        for c in out[tgt:]:
            if c.is_label or c.is_dir: continue
            for p, dp in before:
                if need(p, c) > dp + da:
                    raise Exception("hazard across branch %s: %s -> %s" % (b.text, p.text, c.text))
            da += c.states()
            if da >= 8 or c.mn in ("s_branch", "s_endpgm"): break
    return [i.text for i in out]

class RegAlloc:
    def __init__(self, kind, start, limit):
        self.kind, self.next, self.limit, self.names = kind, start, limit, {}
    def alloc(self, name, n=1, align=1):
        if n > 1 and align == 1:
            align = 2 if n < 4 else (4 if self.kind == "s" else 2)
        b = (self.next + align - 1) // align * align
        self.next = b + n
        assert self.next <= self.limit, "out of %s regs" % self.kind
        self.names[name] = (b, n)
        return R(self.kind, b, n)

class R:
    def __init__(self, kind, b, n):
        self.kind, self.b, self.n = kind, b, n
    def __str__(self):
        return "%s%d" % (self.kind, self.b) if self.n == 1 else "%s[%d:%d]" % (self.kind, self.b, self.b + self.n - 1)
    def __format__(self, spec):
        return str(self)
    def __getitem__(self, i):
        if isinstance(i, slice):
            return R(self.kind, self.b + i.start, i.stop - i.start)
        assert 0 <= i < self.n
        return R(self.kind, self.b + i, 1)
```

```python
import sys, struct, math
from asmlib import *

NAME = "interleave_layers__sliding_block_cached__dense_activation_gelu__decode"
PROF = "--prof" in sys.argv
FORCE_SLOW = "--slow" in sys.argv

def f32(x):
    return "0x%08x" % struct.unpack("<I", struct.pack("<f", x))[0]

GRP = 131072
QP, HP, OP, ML, QS, HS, HINT = 0, 16384, 34816, 51200, 51712, 51840, 51968
LS = 54016
CSQ, CSH = 2 * LS, 2 * LS + 8192
assert CSH + 9216 <= GRP
XPB = 8 * GRP
XPS = 81920
PROFB = 4 << 20
WS_BYTES = 268435456
WQR, W1R = 0, 21248
XB, XBP = 42496, 320
QB, PB, QBP = 43520, 44160, 320
MX, MODE, HB, RED = 44800, 44864, 44928, 46080
VR, W2R = 58880, 91648
LDS_BYTES = 134400

L = []
def I(s): L.append("    " + s)
def LAB(s): L.append(s + ":")
def C(s): L.append("    ; " + s)

sa = RegAlloc("s", 4, 102)
va = RegAlloc("v", 1, 168)
S = lambda n, k=1: sa.alloc(n, k)
V = lambda n, k=1, al=1: va.alloc(n, k, al)

sWS, sK, sV, sWQ, sW1, sW2, sX0, sB1, sB2, sOUT, sDBG = [S(n, 4) for n in
    "WS K V WQ W1 W2 X0 B1 B2 OUT DBG".split()]
kA = S("kA", 16); kB = S("kB", 8); kC = S("kC", 2)
sW, sR, sX, sJ, sKA, sNB, sLayer, sLB, sXO, sXO2, sSpin, sT0, sT1, sT2, sT3, sIsO = [S(n) for n in
    "W R X J KA NB Layer LB XO XO2 Spin T0 T1 T2 T3 IsO".split()]
sF, sSl, mQ, mH, m2 = [S(n, 2) for n in "F Sl mQ mH m2".split()]
sFlag = kA[0:8]
sDbgP = kB[6:8]
stamps = []

vL, vLi, vLg, vT0, vT1, vT2, vT3 = [V(n) for n in "L Li Lg T0 T1 T2 T3".split()]
vD1, vD2 = V("D1"), V("D2")
vXG, vXBw, vXi, vXBr, vXBr2, vWtr, vWtr2, vQPs, vHPs, vSTs, vQG, vQCS, vQSg, vQBw, vQBr, vMXw, vMXr, vPBw, vVtr, vOPs, vMLs, \
 vW2tr, vREDw, vREDr, vXPs, vHG0, vHG1, vHCS, vHSg, vHBw, vHBr, vHint, vXres, vB2, vB1 = \
 [V(n) for n in ("XG XBw Xi XBr XBr2 Wtr Wtr2 QPs HPs STs QG QCS QSg QBw QBr MXw MXr PBw Vtr OPs MLs "
                 "W2tr REDw REDr XPs HG0 HG1 HCS HSg HBw HBr Hint Xres B2 B1").split()]
if PROF:
    vStamp = V("Stamp")
vK = V("K", 16); vVt = V("Vt", 16); vWq = V("Wq", 18); vW1 = V("W1", 18); vW2 = V("W2", 20)
vA = V("A", 20)
vE = V("E", 12)
vDQ, vKO, vVD0, vVD1 = vA[0], vA[1], vA[2], vA[3]
vCSq, vCSh = vQCS, vHCS
vOG, vMLg = vHG0, vHG1

retries = []
def poll_fail(loop):
    r = "R_" + loop
    I(f"s_cbranch_vccnz {r}")
    retries.append((r, loop))

nstamp = [0]
def stamp(tag):
    if not PROF: return
    k = nstamp[0]; nstamp[0] += 1
    stamps.append(tag)
    I(f"s_memrealtime {kC}")
    I("s_waitcnt lgkmcnt(0)")
    I(f"s_lshl_b32 {sT3}, {sLayer}, 5")
    I(f"s_add_u32 {sT3}, {sT3}, {k}")
    I(f"s_mov_b32 m0, {sT3}")
    I(f"v_writelane_b32 {vStamp}, {kC[0]}, m0")

def srd(dst, ptr, size):
    I(f"s_mov_b32 {dst[0]}, {ptr[0]}")
    I(f"s_and_b32 {dst[1]}, {ptr[1]}, 0xffff")
    I(f"s_mov_b32 {dst[2]}, {size}")
    I(f"s_mov_b32 {dst[3]}, 0x20000")

def publish(instr, mask):
    I(f"s_and_b64 exec, {mask}, {sF}")
    I(instr)
    I(f"s_and_b64 exec, {mask}, {sSl}")
    I(instr + " sc1")
    I("s_mov_b64 exec, -1")

def dma_loop(tag, srd_, voff, ldsbase, gbase_s, gstep, first_s, stride, total):
    I(f"s_mul_i32 {sT0}, {first_s}, 1008")
    I(f"s_add_u32 {sT0}, {sT0}, {ldsbase}")
    I(f"s_mul_i32 {sT1}, {first_s}, {gstep}")
    I(f"s_add_u32 {sT1}, {sT1}, {gbase_s}")
    LAB(f"DMA_{tag}")
    I(f"s_mov_b32 m0, {sT0}")
    I(f"s_add_u32 {sT0}, {sT0}, {1008 * stride}")
    I(f"buffer_load_dwordx4 {voff}, {srd_}, {sT1} offen nt lds")
    I(f"s_add_u32 {sT1}, {sT1}, {gstep * stride}")
    I(f"s_cmp_lt_u32 {sT0}, {ldsbase + 1008 * total}")
    I(f"s_cbranch_scc1 DMA_{tag}")

I("s_cmp_ge_u32 s2, 256")
I("s_cbranch_scc1 L_END")
I(f"s_load_dwordx16 {kA}, s[0:1], 0")
I(f"s_load_dwordx8 {kB}, s[0:1], 64")
I(f"s_load_dwordx2 {kC}, s[0:1], 96")
I(f"v_lshrrev_b32 {vT0}, 6, v0")
I(f"v_and_b32 {vL}, 63, v0")
I(f"v_readfirstlane_b32 {sW}, {vT0}")
I(f"v_and_b32 {vLi}, 15, v0")
I(f"v_lshrrev_b32 {vLg}, 4, {vL}")
I(f"s_and_b32 {sX}, s2, 7")
I(f"s_lshr_b32 {sJ}, s2, 3")
I(f"s_lshr_b32 {sKA}, {sJ}, 3")
I(f"s_and_b32 {sNB}, {sJ}, 7")
I(f"s_sub_u32 {sR}, {sW}, 1")
I(f"s_mov_b32 {sLayer}, 0")
I(f"s_mov_b32 {sSpin}, 0x20000")
C("7-row DMA lane map: row = l/9, chunk = l%9")
I(f"v_mul_u32_u24 {vT0}, 57, {vL}")
I(f"v_lshrrev_b32 {vT0}, 9, {vT0}")
I(f"v_mul_u32_u24 {vT1}, 9, {vT0}")
I(f"v_sub_u32 {vT1}, {vL}, {vT1}")
I(f"v_min_u32 {vT2}, 7, {vT1}")
I(f"v_lshlrev_b32 {vT2}, 4, {vT2}")
I(f"v_lshl_add_u32 {vDQ}, {vT0}, 13, {vT2}")
I(f"v_lshlrev_b32 {vT1}, 4, {vT1}")
I(f"v_mul_u32_u24 {vD1}, 9216, {vT0}")
I(f"v_add_u32 {vD1}, {vD1}, {vT1}")
I(f"v_mul_u32_u24 {vD2}, 1152, {vT0}")
I(f"v_add_u32 {vD2}, {vD2}, {vT1}")
C("K lane offset: li*256 + lg*16")
I(f"v_lshlrev_b32 {vKO}, 8, {vLi}")
I(f"v_lshl_add_u32 {vKO}, {vLg}, 4, {vKO}")
C("x slice element: b = lg>>1, kcol = 16w + 2*(l&7) + (lg&1)")
I(f"v_and_b32 {vT0}, 7, {vL}")
I(f"v_lshlrev_b32 {vT0}, 1, {vT0}")
I(f"v_and_b32 {vT1}, 1, {vLg}")
I(f"v_add_u32 {vT0}, {vT0}, {vT1}")
I(f"s_lshl_b32 {sT0}, {sW}, 4")
I(f"v_add_u32 {vT0}, {sT0}, {vT0}")
I(f"v_lshrrev_b32 {vT1}, 1, {vLg}")
I(f"v_mul_u32_u24 {vXBw}, {XBP}, {vT1}")
I(f"v_lshl_add_u32 {vXBw}, {vT0}, 1, {vXBw}")
I(f"s_mul_i32 {sT0}, {sKA}, 144")
I(f"v_add_u32 {vT0}, {sT0}, {vT0}")
I(f"v_lshlrev_b32 {vT3}, 1, {vT0}")
I(f"v_mul_u32_u24 {vXi}, 1152, {vT1}")
I(f"v_add_u32 {vXi}, {vXi}, {vT3}")
C("kv slice byte base: ((b*16 + 2x + kvl)*4096 + 3072 + 128 s)*256")
I(f"s_bfe_u32 {sT0}, {sJ}, 0x10003")
I(f"s_lshl_b32 {sT0}, {sT0}, 4")
I(f"s_lshl_b32 {sT1}, {sX}, 1")
I(f"s_add_u32 {sT0}, {sT0}, {sT1}")
I(f"s_lshr_b32 {sT1}, {sJ}, 4")
I(f"s_add_u32 {sT0}, {sT0}, {sT1}")
I(f"s_lshl_b32 {sT0}, {sT0}, 20")
I(f"s_lshl_b32 {sT1}, {sNB}, 15")
I(f"s_add_u32 {sT0}, {sT0}, {sT1}")
I(f"s_add_u32 {sT0}, {sT0}, {3072 * 256}")
I(f"s_lshl_b32 {sT1}, {sR}, 12")
I(f"s_add_u32 {sXO}, {sT0}, {sT1}")
C("wq slice base: 144 ka * 8192 + (512 x + 64 nb)*2")
I(f"s_mul_i32 {sT2}, {sKA}, {144 * 8192}")
I(f"s_lshl_b32 {sT0}, {sX}, 10")
I(f"s_add_u32 {sT2}, {sT2}, {sT0}")
I(f"s_lshl_b32 {sT0}, {sNB}, 7")
I(f"s_add_u32 {sT2}, {sT2}, {sT0}")
I(f"s_cmp_lt_u32 {sJ}, 16")
I(f"s_cselect_b32 {sIsO}, 1, 0")
I("s_waitcnt lgkmcnt(0)")
srd(sWQ, kA[6:8], 576 * 4096 * 2)
srd(sK, kA[2:4], 2 * 16 * 4096 * 128 * 2)
srd(sX0, kA[0:2], 2304)
srd(sWS, kC, WS_BYTES)
srd(sV, kA[4:6], 2 * 16 * 4096 * 128 * 2)
srd(sW1, kA[12:14], 576 * 4608 * 2)
srd(sB1, kA[14:16], 9216)
srd(sB2, kB[2:4], 1152)
srd(sOUT, kB[4:6], 2304)
srd(sDBG, kB[6:8], 256)
I(f"s_cmp_lt_u32 {sJ}, 16")
I(f"s_cselect_b32 {sW2[0]}, {kA[8]}, {kB[0]}")
I(f"s_cselect_b32 {sW2[1]}, {kA[9]}, {kB[1]}")
I(f"s_and_b32 {sW2[1]}, {sW2[1]}, 0xffff")
I(f"s_cmp_lt_u32 {sJ}, 16")
I(f"s_mov_b32 {sW2[2]}, {4608 * 1152}")
I(f"s_cselect_b32 {sW2[2]}, {4096 * 1152}, {sW2[2]}")
I(f"s_mov_b32 {sW2[3]}, 0x20000")
if PROF:
    I(f"v_mov_b32 {vStamp}, 0")
stamp("start")
I(f"buffer_load_ushort {vXres}, {vXi}, {sX0}, 0 offen")
I(f"s_cmp_eq_u32 {sW}, 0")
I("s_cbranch_scc1 P_AUX")
C("---- main waves: stage 0 loads (wq slice via LDS-DMA, K rows to registers)")
dma_loop("wq", sWQ, vDQ, WQR, sT2, 7 * 8192, sR, 8, 21)
for i in range(4):
    I(f"buffer_load_dwordx4 {vK[4*i:4*i+4]}, {vKO}, {sK}, {sXO} offen offset:{64*i} nt")
I("s_branch P_ADDR")
LAB("P_AUX")
C("---- aux wave: clear this workgroup's share of the hand-off arena, then raise its flag")
for i in range(4):
    I(f"v_mov_b32 {vE[i]}, -1")
I(f"v_lshlrev_b32 {vT0}, 4, {vL}")
I(f"s_lshl_b32 {sT0}, {sX}, 17")
I(f"s_lshl_b32 {sT1}, {sJ}, 12")
I(f"s_add_u32 {sT0}, {sT0}, {sT1}")
for i in range(4):
    I(f"buffer_store_dwordx4 {vE[0:4]}, {vT0}, {sWS}, {sT0} offen offset:{1024*i} sc1")
I(f"s_mul_i32 {sT0}, s2, 1280")
I(f"s_add_u32 {sT0}, {sT0}, {XPB}")
for i in range(2):
    I(f"buffer_store_dwordx4 {vE[0:4]}, {vT0}, {sWS}, {sT0} offen offset:{1024*i} sc1")
C("pull the kernel's own code into L2")
I(f"s_getpc_b64 {sFlag[0:2]}")
LAB("L_PC")
I(f"v_lshlrev_b32 {vT1}, 7, {vL}")
I(f"v_min_u32 {vT1}, L_CODE_END-L_PC, {vT1}")
I(f"global_load_dword {vE[4]}, {vT1}, {sFlag[0:2]}")
I(f"s_getreg_b32 {sT2}, hwreg(HW_REG_XCC_ID, 0, 4)")
I(f"s_or_b32 {sT2}, {sT2}, 0x80")
I(f"v_mov_b32 {vT1}, {sT2}")
I(f"s_lshl_b32 {sT0}, {sX}, 5")
I(f"s_add_u32 {sT1}, {sT0}, {sJ}")
I(f"v_mov_b32 {vT0}, {sT1}")
I("s_mov_b64 exec, 1")
I("s_waitcnt vmcnt(1)")
I(f"buffer_store_byte {vT1}, {vT0}, {sDBG}, 0 offen sc1")
I("s_mov_b64 exec, -1")
C("static LDS init: ones row of XB, MX = -inf, RED = 0")
I(f"v_mov_b32 {vE[0]}, 0x3f803f80")
I(f"v_lshlrev_b32 {vT0}, 2, {vL}")
I(f"ds_write_b32 {vT0}, {vE[0]} offset:{XB + 2*XBP}")
I(f"ds_write_b32 {vT0}, {vE[0]} offset:{XB + 2*XBP + 64}")
I(f"v_mov_b32 {vE[1]}, 0xff800000")
I("s_mov_b64 exec, 0xffff")
I(f"ds_write_b32 {vT0}, {vE[1]} offset:{MX}")
I("s_mov_b64 exec, -1")
for i in range(4):
    I(f"v_mov_b32 {vE[4+i]}, 0") if i else None
I(f"v_lshlrev_b32 {vT0}, 4, {vL}")
I("s_waitcnt vmcnt(1)")
I(f"v_mov_b32 {vE[4]}, 0")
for i in range(13):
    I(f"ds_write_b128 {vT0}, {vE[4:8]} offset:{RED + 1024*i if i < 12 else RED + 12800 - 1024}")
for i in range(4):
    I(f"v_mov_b32 {vVt[i]}, 0x3f803f80")
LAB("P_ADDR")
I(f"buffer_load_ushort {vB2}, {vT3}, {sB2}, 0 offen")
I(f"s_lshl_b32 {sLB}, {sX}, 17")
C("W2-phase column: col = 288 kh + 32 w + (l&31); b = l>>5")
I(f"s_bfe_u32 {sT0}, {sJ}, 0x10003")
I(f"s_mul_i32 {sT1}, {sT0}, 288")
I(f"s_lshl_b32 {sT2}, {sW}, 5")
I(f"s_add_u32 {sT1}, {sT1}, {sT2}")
I(f"v_and_b32 {vT0}, 31, {vL}")
I(f"v_add_u32 {vT0}, {sT1}, {vT0}")
I(f"s_mul_i32 {sT2}, {sX}, 576")
I(f"v_add_u32 {vT1}, {sT2}, {vT0}")
I(f"v_lshlrev_b32 {vT1}, 1, {vT1}")
I(f"buffer_load_ushort {vB1}, {vT1}, {sB1}, 0 offen")
I(f"v_lshrrev_b32 {vT1}, 5, {vL}")
I(f"v_lshlrev_b32 {vT0}, 2, {vT0}")
I(f"v_add_u32 {vHCS}, {CSH}, {vT0}")
I(f"v_mul_u32_u24 {vHG0}, 9216, {vT1}")
I(f"v_add3_u32 {vHG0}, {vHG0}, {vT0}, {vT0}")
I(f"v_sub_u32 {vHG0}, {vHG0}, {vT0}")
I(f"v_add_u32 {vHG0}, {HP}, {vHG0}")
I(f"v_add_u32 {vHG1}, 4608, {vHG0}")
I(f"v_and_b32 {vT2}, 3, {vL}")
I(f"v_lshlrev_b32 {vT2}, 3, {vT2}")
I(f"v_lshl_add_u32 {vHSg}, {vT1}, 5, {vT2}")
I(f"s_lshl_b32 {sT1}, {sT0}, 6")
I(f"s_add_u32 {sT1}, {sT1}, {HS}")
I(f"v_add_u32 {vHSg}, {sT1}, {vHSg}")
C("q stats gather: QS + (kvl*2 + b)*32 + (l&3)*8 ; (kvl*2+b) == ka")
I(f"s_lshl_b32 {sT1}, {sKA}, 5")
I(f"s_add_u32 {sT1}, {sT1}, {QS}")
I(f"v_add_u32 {vQSg}, {sT1}, {vT2}")
C("HB write/read")
I(f"s_lshl_b32 {sT1}, {sW}, 7")
I(f"s_add_u32 {sT1}, {sT1}, {HB}")
I(f"v_lshl_add_u32 {vHBw}, {vL}, 1, {sT1}")
I(f"v_and_b32 {vT0}, 1, {vLi}")
I(f"v_lshlrev_b32 {vT1}, 4, {vLg}")
I(f"v_lshl_add_u32 {vHBr}, {vT0}, 6, {vT1}")
I(f"v_add_u32 {vHBr}, {sT1}, {vHBr}")
C("QB/PB operand read: (li&1)*QBP + lg*16")
I(f"v_mul_u32_u24 {vQBr}, {QBP}, {vT0}")
I(f"v_add_u32 {vQBr}, {vQBr}, {vT1}")
C("MX: [layer][head][lg]")
I(f"v_lshlrev_b32 {vMXr}, 4, {vT0}")
I(f"v_add_u32 {vMXr}, {MX}, {vMXr}")
I(f"v_lshl_add_u32 {vMXw}, {vLg}, 2, {vMXr}")
C("PB write: head*QBP + (16 r + 4 lg)*2")
I(f"s_lshl_b32 {sT1}, {sR}, 5")
I(f"v_mul_u32_u24 {vPBw}, {QBP}, {vT0}")
I(f"v_lshl_add_u32 {vPBw}, {vLg}, 3, {vPBw}")
I(f"v_add_u32 {vPBw}, {sT1}, {vPBw}")
C("XB operand reads")
I(f"v_min_u32 {vT2}, 2, {vLi}")
I(f"v_mul_u32_u24 {vT2}, {XBP}, {vT2}")
I(f"v_add_u32 {vXBr}, {vT2}, {vT1}")
I(f"v_lshl_add_u32 {vXBr2}, {vLg}, 3, {vT2}")
C("weight transpose-read addresses")
I(f"v_lshrrev_b32 {vT2}, 2, {vLi}")
I(f"v_and_b32 {vT3}, 3, {vLi}")
I(f"v_lshlrev_b32 {vT3}, 3, {vT3}")
I(f"v_lshl_add_u32 {vT0}, {vLg}, 3, {vT2}")
I(f"v_mul_u32_u24 {vW2tr}, 144, {vT0}")
I(f"v_add_u32 {vW2tr}, {vW2tr}, {vT3}")
I(f"v_add_u32 {vWtr}, {sT1}, {vW2tr}")
I(f"v_lshl_add_u32 {vWtr2}, {vLg}, 2, {vT2}")
I(f"v_mul_u32_u24 {vWtr2}, 144, {vWtr2}")
I(f"v_add3_u32 {vWtr2}, {vWtr2}, {vT3}, {sT1}")
I(f"s_cmp_lt_u32 {sJ}, 16")
I(f"s_cselect_b32 {sT2}, {sR}, {sW}")
I(f"s_mul_i32 {sT2}, {sT2}, {32 * 144}")
I(f"s_add_u32 {sT2}, {sT2}, {W2R}")
I(f"v_add_u32 {vW2tr}, {sT2}, {vW2tr}")
C("V transpose read: row*256 + ((2r + ((li&3)>>1)) ^ swz)*16 + (li&1)*8, swz = 2*((li>>2) | (lg&1)<<2)")
I(f"v_and_b32 {vT1}, 1, {vLg}")
I(f"v_lshl_or_b32 {vT1}, {vT1}, 2, {vT2}")
I(f"v_lshlrev_b32 {vT1}, 5, {vT1}")
I(f"v_add_u32 {vT3}, {sT1}, {vT3}")
I(f"v_xor_b32 {vT1}, {vT1}, {vT3}")
I(f"v_lshl_add_u32 {vVtr}, {vT0}, 8, {vT1}")
I(f"v_add_u32 {vVtr}, {VR}, {vVtr}")
C("V DMA source offsets: lg*256 + (li ^ 2*lg)*16, second variant ^128")
I(f"v_lshlrev_b32 {vT1}, 1, {vLg}")
I(f"v_xor_b32 {vT1}, {vT1}, {vLi}")
I(f"v_lshlrev_b32 {vT1}, 4, {vT1}")
I(f"v_lshl_add_u32 {vVD0}, {vLg}, 8, {vT1}")
I(f"v_xor_b32 {vVD1}, 128, {vVD0}")
C("QP / HP store offsets")
I(f"s_lshl_b32 {sT1}, {sR}, 6")
I(f"v_lshl_add_u32 {vT0}, {vLg}, 4, {sT1}")
I(f"v_cmp_eq_u32 vcc, 2, {vLi}")
I(f"v_lshlrev_b32 {vT1}, 13, {vLi}")
I(f"v_mov_b32 {vT2}, {CSQ}")
I(f"v_cndmask_b32 {vT1}, {vT1}, {vT2}, vcc")
I(f"s_lshl_b32 {sT1}, {sNB}, 10")
I(f"s_lshl_b32 {sT2}, {sKA}, 8")
I(f"s_add_u32 {sT1}, {sT1}, {sT2}")
I(f"v_add3_u32 {vQPs}, {vT0}, {vT1}, {sT1}")
I(f"v_mul_u32_u24 {vT1}, 9216, {vLi}")
I(f"v_add_u32 {vT1}, {HP}, {vT1}")
I(f"v_mov_b32 {vT2}, {CSH}")
I(f"v_cndmask_b32 {vT1}, {vT1}, {vT2}, vcc")
I(f"s_mul_i32 {sT1}, {sNB}, 288")
I(f"s_mul_i32 {sT2}, {sKA}, 2304")
I(f"s_add_u32 {sT1}, {sT1}, {sT2}")
I(f"v_add3_u32 {vHPs}, {vT0}, {vT1}, {sT1}")
C("stats store: QS + ((nb>>2)*2 + lane)*32 + ka*8")
I(f"s_lshr_b32 {sT1}, {sNB}, 2")
I(f"s_lshl_b32 {sT1}, {sT1}, 6")
I(f"s_lshl_b32 {sT2}, {sKA}, 3")
I(f"s_add_u32 {sT1}, {sT1}, {sT2}")
I(f"s_add_u32 {sT1}, {sT1}, {QS}")
I(f"v_and_b32 {vT0}, 1, {vL}")
I(f"v_lshl_add_u32 {vSTs}, {vT0}, 5, {sT1}")
C("q gather: b*8192 + (4 kvl + r)*1024 + l*4")
I(f"s_lshr_b32 {sT1}, {sJ}, 4")
I(f"s_lshl_b32 {sT1}, {sT1}, 2")
I(f"s_add_u32 {sT1}, {sT1}, {sR}")
I(f"s_and_b32 {sT1}, {sT1}, 7")
I(f"s_lshl_b32 {sT1}, {sT1}, 10")
I(f"v_lshl_add_u32 {vT0}, {vL}, 2, {sT1}")
I(f"v_add_u32 {vQCS}, {CSQ}, {vT0}")
I(f"s_lshl_b32 {sT2}, {sT0}, 13")
I(f"v_add_u32 {vQG}, {sT2}, {vT0}")
C("QB write: t' = 64 r + l -> head = r>>1, d = (r&1)*64 + l")
I(f"s_lshr_b32 {sT1}, {sR}, 1")
I(f"s_mul_i32 {sT1}, {sT1}, {QBP}")
I(f"s_and_b32 {sT2}, {sR}, 1")
I(f"s_lshl_b32 {sT2}, {sT2}, 7")
I(f"s_add_u32 {sT1}, {sT1}, {sT2}")
I(f"v_lshl_add_u32 {vQBw}, {vL}, 1, {sT1}")
C("OP store: OP + ((kvl*2 + head)*4 + (r>>1))*1024 + (j&15)*64 + (r&1)*32 + lg*8")
I(f"s_lshr_b32 {sT1}, {sJ}, 4")
I(f"s_lshl_b32 {sT1}, {sT1}, 13")
I(f"s_lshr_b32 {sT2}, {sR}, 1")
I(f"s_lshl_b32 {sT2}, {sT2}, 10")
I(f"s_add_u32 {sT1}, {sT1}, {sT2}")
I(f"s_and_b32 {sT2}, {sJ}, 15")
I(f"s_lshl_b32 {sT2}, {sT2}, 6")
I(f"s_add_u32 {sT1}, {sT1}, {sT2}")
I(f"s_and_b32 {sT2}, {sR}, 1")
I(f"s_lshl_b32 {sT2}, {sT2}, 5")
I(f"s_add_u32 {sT1}, {sT1}, {sT2}")
I(f"s_add_u32 {sT1}, {sT1}, {OP}")
I(f"v_and_b32 {vT0}, 1, {vLi}")
I(f"v_lshlrev_b32 {vT1}, 12, {vT0}")
I(f"v_lshl_add_u32 {vT1}, {vLg}, 3, {vT1}")
I(f"v_add_u32 {vOPs}, {sT1}, {vT1}")
C("ML store: ML + (kvl*2 + head)*128 + (j&15)*8")
I(f"s_lshr_b32 {sT1}, {sJ}, 4")
I(f"s_lshl_b32 {sT1}, {sT1}, 8")
I(f"s_and_b32 {sT2}, {sJ}, 15")
I(f"s_lshl_b32 {sT2}, {sT2}, 3")
I(f"s_add_u32 {sT1}, {sT1}, {sT2}")
I(f"s_add_u32 {sT1}, {sT1}, {ML}")
I(f"v_lshl_add_u32 {vMLs}, {vT0}, 7, {sT1}")
C("O gather: OP + (kvl_o*8 + r)*1024 + li*64 + lg*16 ; ML + (kvl_o*2 + (r>>2))*128 + lg*32")
I(f"s_cmp_lt_u32 {sJ}, 16")
I("s_cbranch_scc0 P_NOTO")
I(f"s_lshl_b32 {sT1}, {sT0}, 3")
I(f"s_add_u32 {sT1}, {sT1}, {sR}")
I(f"s_and_b32 {sT1}, {sT1}, 15")
I(f"s_lshr_b32 {sT2}, {sT1}, 2")
I(f"s_lshl_b32 {sT1}, {sT1}, 10")
I(f"s_add_u32 {sT1}, {sT1}, {OP}")
I(f"v_lshlrev_b32 {vT1}, 6, {vLi}")
I(f"v_lshl_add_u32 {vT1}, {vLg}, 4, {vT1}")
I(f"v_add_u32 {vOG}, {sT1}, {vT1}")
I(f"s_lshl_b32 {sT2}, {sT2}, 7")
I(f"s_add_u32 {sT2}, {sT2}, {ML}")
I(f"v_lshl_add_u32 {vMLg}, {vLg}, 5, {sT2}")
LAB("P_NOTO")
C("RED write: O: ((lg>>1)*80 + li)*80 + (2r + (lg&1))*4 ; W2: li*80 + w*4")
I(f"v_mul_u32_u24 {vREDw}, 80, {vLi}")
I(f"v_lshrrev_b32 {vT0}, 1, {vLg}")
I(f"v_mul_u32_u24 {vT0}, 6400, {vT0}")
I(f"v_and_b32 {vT1}, 1, {vLg}")
I(f"v_lshl_add_u32 {vT0}, {vT1}, 2, {vT0}")
I(f"v_mul_u32_u24 {vT0}, {sIsO}, {vT0}")
I(f"s_lshl_b32 {sT1}, {sR}, 3")
I(f"s_lshl_b32 {sT2}, {sW}, 2")
I(f"s_cmp_lt_u32 {sJ}, 16")
I(f"s_cselect_b32 {sT1}, {sT1}, {sT2}")
I(f"s_add_u32 {sT1}, {sT1}, {RED}")
I(f"v_add3_u32 {vREDw}, {vREDw}, {vT0}, {sT1}")
C("RED read: v = 16 w + (l>>2): ((v&1)*80 + (v>>1))*80 + (l&3)*16 ; XP store: block + v*4")
I(f"v_lshrrev_b32 {vT0}, 2, v0")
I(f"v_and_b32 {vT1}, 1, {vT0}")
I(f"v_mul_u32_u24 {vT1}, 80, {vT1}")
I(f"v_lshrrev_b32 {vT2}, 1, {vT0}")
I(f"v_add_u32 {vT1}, {vT1}, {vT2}")
I(f"v_mul_u32_u24 {vT1}, 80, {vT1}")
I(f"v_and_b32 {vT2}, 3, {vL}")
I(f"v_lshl_add_u32 {vREDr}, {vT2}, 4, {vT1}")
I(f"v_add_u32 {vREDr}, {RED}, {vREDr}")
I(f"s_lshr_b32 {sT1}, {sNB}, 1")
I(f"s_mul_i32 {sT1}, {sT1}, 20480")
I(f"s_lshl_b32 {sT2}, {sX}, 1")
I(f"s_add_u32 {sT2}, {sT2}, {sT0}")
I(f"s_mul_i32 {sT2}, {sT2}, 1280")
I(f"s_add_u32 {sT1}, {sT1}, {sT2}")
I(f"s_and_b32 {sT2}, {sNB}, 1")
I(f"s_mul_i32 {sT2}, {sT2}, 704")
I(f"s_add_u32 {sT1}, {sT1}, {sT2}")
I(f"v_lshl_add_u32 {vXPs}, {vT0}, 2, {sT1}")
C("X gather: ka*20480 + (l>>3)*1280 + v*4 + (v>=144 ? 128 : 0), v = 32 w + 4 (l&7)")
I(f"v_and_b32 {vT0}, 7, {vL}")
I(f"s_lshl_b32 {sT1}, {sW}, 7")
I(f"v_lshl_add_u32 {vT0}, {vT0}, 4, {sT1}")
I(f"v_cmp_lt_u32 vcc, 575, {vT0}")
I(f"v_add_u32 {vT1}, 128, {vT0}")
I(f"v_cndmask_b32 {vT0}, {vT0}, {vT1}, vcc")
I(f"v_lshrrev_b32 {vT1}, 3, {vL}")
I(f"v_mul_u32_u24 {vT1}, 1280, {vT1}")
I(f"s_mul_i32 {sT1}, {sKA}, 20480")
I(f"v_add3_u32 {vXG}, {vT0}, {vT1}, {sT1}")
C("hint word: HINT + (j&15)*64 + w*4 (+1024 for the second one)")
I(f"s_and_b32 {sT1}, {sJ}, 15")
I(f"s_lshl_b32 {sT1}, {sT1}, 6")
I(f"s_lshl_b32 {sT2}, {sW}, 2")
I(f"s_add_u32 {sT1}, {sT1}, {sT2}")
I(f"s_add_u32 {sT1}, {sT1}, {HINT}")
I(f"v_mov_b32 {vHint}, {sT1}")
C("lane masks")
I(f"s_mov_b32 {mQ[0]}, 0x00070007")
I(f"s_mov_b32 {mQ[1]}, 0x00070007")
I(f"s_mov_b32 {mH[0]}, 0x00070007")
I(f"s_cmp_eq_u32 {sR}, 4")
I(f"s_cselect_b32 {mH[1]}, 0, 0x00070007")
I(f"s_mov_b32 {m2[0]}, 0x00030003")
I(f"s_mov_b32 {m2[1]}, 0x00030003")
I(f"s_cmp_eq_u32 {sW}, 0")
I("s_cbranch_scc1 P_AUX2")
C("main waves: wq share + x0 landed; queue the V tile behind K")
I("s_waitcnt vmcnt(6)")
I(f"ds_write_b16 {vXBw}, {vXres} offset:{XB}")
I(f"s_lshl_b32 {sT0}, {sR}, 12")
I(f"s_add_u32 {sT0}, {sT0}, {VR}")
I(f"s_mov_b32 m0, {sT0}")
for i in range(4):
    I(f"buffer_load_dwordx4 {vVD0 if i < 2 else vVD1}, {sV}, {sXO} offen offset:{1024*i} nt lds")
I("s_branch P_DONE")
LAB("P_AUX2")
I(f"ds_write_b16 {vXBw}, {vXres} offset:{XB}")
C("aux wave: wait until the 32 workgroups of this group have cleared; same die for all -> fast mode")
I(f"s_getreg_b32 {sT2}, hwreg(HW_REG_XCC_ID, 0, 4)")
I(f"s_or_b32 {sT2}, {sT2}, 0x80")
I(f"s_mul_i32 {sT2}, {sT2}, 0x01010101")
I(f"s_lshl_b32 {sT0}, {sX}, 5")
LAB("FLAG1")
I(f"s_load_dwordx8 {sFlag}, {sDbgP}, {sT0} glc")
I(f"s_sub_u32 {sSpin}, {sSpin}, 1")
I("s_cbranch_scc1 L_END")
I("s_waitcnt lgkmcnt(0)")
I(f"s_and_b64 {sF}, {sFlag[0:2]}, {sFlag[2:4]}")
I(f"s_and_b64 {sSl}, {sFlag[4:6]}, {sFlag[6:8]}")
I(f"s_and_b64 {sF}, {sF}, {sSl}")
I(f"s_and_b32 {sT1}, {sF[0]}, {sF[1]}")
I(f"s_and_b32 {sT3}, {sT1}, 0x80808080")
I(f"s_cmp_lg_u32 {sT3}, 0x80808080")
I("s_cbranch_scc1 FLAG1")
I(f"s_or_b64 {sF}, {sFlag[0:2]}, {sFlag[2:4]}")
I(f"s_or_b64 {sSl}, {sFlag[4:6]}, {sFlag[6:8]}")
I(f"s_or_b64 {sF}, {sF}, {sSl}")
I(f"s_or_b32 {sT3}, {sF[0]}, {sF[1]}")
I(f"s_xor_b32 {sT1}, {sT1}, {sT2}")
I(f"s_xor_b32 {sT3}, {sT3}, {sT2}")
I(f"s_or_b32 {sT1}, {sT1}, {sT3}")
if FORCE_SLOW:
    I(f"s_mov_b32 {sT1}, 1")
I(f"v_mov_b32 {vT0}, {sT1}")
I(f"v_mov_b32 {vT1}, {MODE}")
I(f"ds_write_b32 {vT1}, {vT0}")
LAB("P_DONE")
I(f"v_lshlrev_b32 {vXres}, 16, {vXres}")
I(f"s_mov_b32 {sXO}, {XPB}")
I(f"s_mov_b32 {sXO2}, {XPB + 10240}")
stamp("pro_done")

def gemv1(tag, wreg, region, ntiles, vst, mask, stoff):
    I("s_waitcnt lgkmcnt(0)")
    I("s_barrier")
    if tag == "q":
        I(f"s_cmp_lg_u32 {sLayer}, 0")
        I("s_cbranch_scc1 G_q_mode_done")
        I(f"v_mov_b32 {vT1}, {MODE}")
        I(f"ds_read_b32 {vT0}, {vT1}")
        I("s_waitcnt lgkmcnt(0)")
        I(f"v_cmp_eq_u32 {sF}, 0, {vT0}")
        I(f"v_cmp_ne_u32 {sSl}, 0, {vT0}")
        LAB("G_q_mode_done")
    I(f"s_cmp_lt_u32 {sR}, {ntiles}")
    I(f"s_cbranch_scc0 G_{tag}_notile")
    for i in range(4):
        I(f"ds_read_b128 {vA[4*i:4*i+4]}, {vXBr} offset:{XB + 64*i}")
    I(f"ds_read_b64 {vA[16:18]}, {vXBr2} offset:{XB + 256}")
    I(f"s_cmp_lg_u32 {sLayer}, 0")
    I(f"s_cbranch_scc1 G_{tag}_havew")
    for i in range(4):
        for h in range(2):
            I(f"ds_read_b64_tr_b16 {wreg[4*i+2*h:4*i+2*h+2]}, {vWtr} offset:{region + (32*i+4*h)*144}")
    I(f"ds_read_b64_tr_b16 {wreg[16:18]}, {vWtr2} offset:{region + 128*144}")
    LAB(f"G_{tag}_havew")
    I("s_waitcnt lgkmcnt(0)")
    for i in range(4):
        I(f"v_mfma_f32_16x16x32_bf16 {vE[0:4]}, {wreg[4*i:4*i+4]}, {vA[4*i:4*i+4]}, {vE[0:4] if i else 0}")
    I(f"v_mfma_f32_16x16x16_bf16 {vE[0:4]}, {wreg[16:18]}, {vA[16:18]}, {vE[0:4]}")
    publish(f"buffer_store_dwordx4 {vE[0:4]}, {vst}, {sWS}, {sLB} offen", mask)
    I(f"s_branch G_{tag}_done")
    LAB(f"G_{tag}_notile")
    I(f"s_cmp_lg_u32 {sR}, 7")
    I(f"s_cbranch_scc1 G_{tag}_done")
    I(f"s_and_b32 {sT0}, {sNB}, 3")
    I(f"s_cbranch_scc1 G_{tag}_done")
    for i in range(4):
        I(f"ds_read_b128 {vA[4*i:4*i+4]}, {vXBr} offset:{XB + 64*i}")
    I(f"ds_read_b64 {vA[16:18]}, {vXBr2} offset:{XB + 256}")
    I(f"v_cmp_eq_u32 vcc, 1, {vL}")
    I("s_waitcnt lgkmcnt(0)")
    for i in range(4):
        I(f"v_mfma_f32_16x16x32_bf16 {vE[0:4]}, {vA[4*i:4*i+4]}, {vA[4*i:4*i+4]}, {vE[0:4] if i else 0}")
    I(f"v_mfma_f32_16x16x16_bf16 {vE[0:4]}, {vA[16:18]}, {vA[16:18]}, {vE[0:4]}")
    I(f"v_cndmask_b32 {vE[3]}, {vE[0]}, {vE[1]}, vcc")
    publish(f"buffer_store_dwordx2 {vE[2:4]}, {vSTs}, {sWS}, {sLB} offen offset:{stoff}", "3")
    LAB(f"G_{tag}_done")

def ln_stats(s1, s2, mean, rstd):
    for qp in ("[1,0,3,2]", "[2,3,0,1]"):
        I(f"v_add_f32_dpp {s1}, {s1}, {s1} quad_perm:{qp} row_mask:0xf bank_mask:0xf")
        I(f"v_add_f32_dpp {s2}, {s2}, {s2} quad_perm:{qp} row_mask:0xf bank_mask:0xf")
    I(f"v_mul_f32 {mean}, {f32(1/576)}, {s1}")
    I(f"v_mul_f32 {s1}, {mean}, {mean}")
    I(f"v_fmamk_f32 {s2}, {s2}, {f32(1/576)}, {vT3}")
    I(f"v_sub_f32 {s2}, {s2}, {s1}")
    I(f"v_max_f32 {s2}, {s2}, {vT3}")
    I(f"v_rsq_f32 {rstd}, {s2}")

def gather4(tag, addrs, vst, vcs_addr, cs_offs, vcs):
    I(f"v_mov_b32 {vT3}, {f32(1e-5)}")
    I(f"s_cmp_lg_u32 {sLayer}, 0")
    I(f"s_cbranch_scc1 {tag}_1")
    LAB(f"{tag}_0")
    for a in range(4):
        I(f"buffer_load_dword {vE[a]}, {addrs[a][0]}, {sWS}, {sLB} offen offset:{addrs[a][1]} sc1")
    I(f"buffer_load_dwordx2 {vE[4:6]}, {vst}, {sWS}, {sLB} offen sc1")
    for a in range(4):
        if cs_offs[a] < 4096:
            I(f"buffer_load_dword {vE[6+a]}, {vcs_addr}, {sWS}, {sLB} offen offset:{cs_offs[a]} sc1")
        else:
            I(f"s_add_u32 {sT0}, {sLB}, 4608")
            I(f"buffer_load_dword {vE[6+a]}, {vcs_addr}, {sWS}, {sT0} offen offset:{cs_offs[a]-4608} sc1")
    return

def gather4_finish(tag, addrs, vst, vcs):
    I("s_waitcnt vmcnt(0)")
    I(f"v_max3_u32 {vT0}, {vE[0]}, {vE[1]}, {vE[2]}")
    I(f"v_max3_u32 {vT1}, {vE[3]}, {vE[4]}, {vE[5]}")
    I(f"v_max3_u32 {vT2}, {vE[6]}, {vE[7]}, {vE[8]}")
    I(f"v_max3_u32 {vT0}, {vT0}, {vT1}, {vE[9]}")
    I(f"v_max_u32 {vT0}, {vT0}, {vT2}")
    I(f"v_cmp_eq_u32 vcc, -1, {vT0}")
    poll_fail(f"{tag}_0r")
    I(f"v_add_f32 {vE[6]}, {vE[6]}, {vE[7]}")
    I(f"v_add_f32 {vE[8]}, {vE[8]}, {vE[9]}")
    I(f"v_add_f32 {vcs}, {vE[6]}, {vE[8]}")
    I(f"s_branch {tag}_ok")
    LAB(f"{tag}_1")
    for a in range(4):
        I(f"buffer_load_dword {vE[a]}, {addrs[a][0]}, {sWS}, {sLB} offen offset:{addrs[a][1]} sc1")
    I(f"buffer_load_dwordx2 {vE[4:6]}, {vst}, {sWS}, {sLB} offen sc1")
    I("s_waitcnt vmcnt(0)")
    I(f"v_max3_u32 {vT0}, {vE[0]}, {vE[1]}, {vE[2]}")
    I(f"v_max3_u32 {vT1}, {vE[3]}, {vE[4]}, {vE[5]}")
    I(f"v_max_u32 {vT0}, {vT0}, {vT1}")
    I(f"v_cmp_eq_u32 vcc, -1, {vT0}")
    poll_fail(f"{tag}_1")
    LAB(f"{tag}_ok")
    I(f"v_add_f32 {vE[0]}, {vE[0]}, {vE[1]}")
    I(f"v_add_f32 {vE[2]}, {vE[2]}, {vE[3]}")
    ln_stats(vE[4], vE[5], vT0, vT1)
    I(f"v_add_f32 {vE[0]}, {vE[0]}, {vE[2]}")
    I(f"v_fma_f32 {vE[0]}, -{vT0}, {vcs}, {vE[0]}")

def final_reduce(tag, hint_off):
    I("s_waitcnt lgkmcnt(0)")
    I("s_barrier")
    I(f"ds_read_b128 {vE[0:4]}, {vREDr}")
    publish(f"buffer_store_dword {vL}, {vHint}, {sWS}, {sLB} offen offset:{hint_off}", "1")
    I(f"s_mov_b32 {sT0}, 0x11111111")
    I("s_waitcnt lgkmcnt(0)")
    I(f"v_add_f32 {vE[0]}, {vE[0]}, {vE[1]}")
    I(f"v_add_f32 {vE[2]}, {vE[2]}, {vE[3]}")
    I(f"v_add_f32 {vE[0]}, {vE[0]}, {vE[2]}")
    for qp in ("[1,0,3,2]", "[2,3,0,1]"):
        I(f"v_add_f32_dpp {vE[0]}, {vE[0]}, {vE[0]} quad_perm:{qp} row_mask:0xf bank_mask:0xf")
    I(f"s_mov_b32 exec_lo, {sT0}")
    I(f"s_mov_b32 exec_hi, {sT0}")
    I(f"buffer_store_dword {vE[0]}, {vXPs}, {sWS}, {sXO} offen sc1")
    I("s_mov_b64 exec, -1")

def hint_wait(tag, hint_off):
    LAB(tag)
    I(f"buffer_load_dword {vT0}, {vHint}, {sWS}, {sLB} offen offset:{hint_off} sc1")
    I("s_waitcnt vmcnt(0)")
    I(f"v_cmp_eq_u32 vcc, -1, {vT0}")
    poll_fail(tag)

def xgather(tag):
    LAB(tag)
    I(f"buffer_load_dwordx4 {vE[0:4]}, {vXG}, {sWS}, {sXO} offen sc1")
    I(f"buffer_load_dwordx4 {vE[4:8]}, {vXG}, {sWS}, {sXO2} offen sc1")
    I("s_waitcnt vmcnt(0)")
    I(f"v_max3_u32 {vT0}, {vE[0]}, {vE[1]}, {vE[2]}")
    I(f"v_max3_u32 {vT1}, {vE[3]}, {vE[4]}, {vE[5]}")
    I(f"v_max3_u32 {vT0}, {vT0}, {vE[6]}, {vE[7]}")
    I(f"v_max_u32 {vT0}, {vT0}, {vT1}")
    I(f"v_cmp_eq_u32 vcc, -1, {vT0}")
    poll_fail(tag)
    I(f"v_pk_add_f32 {vE[0:2]}, {vE[0:2]}, {vE[4:6]}")
    I(f"v_pk_add_f32 {vE[2:4]}, {vE[2:4]}, {vE[6:8]}")
    I(f"s_add_u32 {sXO}, {sXO}, {XPS}")
    I(f"s_add_u32 {sXO2}, {sXO2}, {XPS}")
    I(f"v_permlane32_swap_b32 {vE[0]}, {vE[1]}")
    I(f"v_permlane32_swap_b32 {vE[2]}, {vE[3]}")
    I(f"v_add_f32 {vE[0]}, {vE[0]}, {vE[1]}")
    I(f"v_add_f32 {vE[2]}, {vE[2]}, {vE[3]}")
    I(f"v_permlane16_swap_b32 {vE[0]}, {vE[2]}")
    I(f"v_add_f32 {vE[0]}, {vE[0]}, {vE[2]}")
    I(f"v_add_f32_dpp {vE[0]}, {vE[0]}, {vE[0]} row_ror:8 row_mask:0xf bank_mask:0xf")
    I(f"v_add_f32 {vE[0]}, {vE[0]}, {vXres}")
    I(f"v_cvt_pk_bf16_f32 {vE[0]}, {vE[0]}, {vE[0]}")

LAB("L_LOOP")
C("======== [A] q projection (K-slice partials)")
gemv1("q", vWq, WQR, 4, vQPs, mQ, 0)
stamp("q_pub")
C("======== [B] attention")
I(f"s_cmp_lt_u32 {sR}, 4")
I("s_cbranch_scc0 A_nogather")
qaddrs = [(vQG, 256 * a) for a in range(4)]
I(f"s_cmp_lg_u32 {sLayer}, 0")
I("s_cbranch_scc1 A_g")
I("s_waitcnt vmcnt(6)")
LAB("A_g")
gather4("AG", qaddrs, vQSg, vQCS, [256 * a for a in range(4)], vCSq)
I("s_barrier")
I("s_branch AG_0w")
LAB("AG_0r")
for a in range(4):
    I(f"buffer_load_dword {vE[a]}, {qaddrs[a][0]}, {sWS}, {sLB} offen offset:{qaddrs[a][1]} sc1")
I(f"buffer_load_dwordx2 {vE[4:6]}, {vQSg}, {sWS}, {sLB} offen sc1")
for a in range(4):
    I(f"buffer_load_dword {vE[6+a]}, {vQCS}, {sWS}, {sLB} offen offset:{256*a} sc1")
LAB("AG_0w")
gather4_finish("AG", qaddrs, vQSg, vCSq)
I(f"v_mul_f32 {vT1}, {f32(128 ** -0.5 * math.log2(math.e))}, {vT1}")
I(f"v_mul_f32 {vE[0]}, {vE[0]}, {vT1}")
I(f"v_cvt_pk_bf16_f32 {vE[0]}, {vE[0]}, {vE[0]}")
I(f"ds_write_b16 {vQBw}, {vE[0]} offset:{QB}")
I("s_branch A_qready")
LAB("A_nogather")
I(f"s_cmp_lg_u32 {sLayer}, 0")
I("s_cbranch_scc1 A_qready")
C("first layer, waves {aux,4..7}: stage 2 loads (wo, or the first 40 groups of w2... w1 first)")
I("s_barrier")
I(f"s_sub_u32 {sT3}, {sW}, 4")
I(f"s_max_i32 {sT3}, {sT3}, 0")
I(f"s_bfe_u32 {sT0}, {sJ}, 0x10003")
I(f"s_cmp_lt_u32 {sJ}, 16")
I("s_cbranch_scc0 A_s2_w")
I(f"s_lshl_b32 {sT1}, {sX}, 1")
I(f"s_add_u32 {sT0}, {sT0}, {sT1}")
I(f"s_mul_i32 {sT2}, {sT0}, {256 * 1152}")
I(f"s_mul_i32 {sT0}, {sNB}, 144")
I(f"s_add_u32 {sT2}, {sT2}, {sT0}")
dma_loop("wo", sW2, vD2, W2R, sT2, 7 * 1152, sT3, 5, 37)
I("s_branch A_s2_done")
LAB("A_s2_w")
def w1_base():
    I(f"s_mul_i32 {sT2}, {sKA}, {144 * 9216}")
    I(f"s_mul_i32 {sT0}, {sX}, 1152")
    I(f"s_add_u32 {sT2}, {sT2}, {sT0}")
    I(f"s_mul_i32 {sT0}, {sNB}, 144")
    I(f"s_add_u32 {sT2}, {sT2}, {sT0}")
def w2_base():
    I(f"s_bfe_u32 {sT0}, {sJ}, 0x10003")
    I(f"s_lshl_b32 {sT1}, {sX}, 1")
    I(f"s_add_u32 {sT0}, {sT0}, {sT1}")
    I(f"s_mul_i32 {sT2}, {sT0}, {288 * 1152}")
    I(f"s_mul_i32 {sT0}, {sNB}, 144")
    I(f"s_add_u32 {sT2}, {sT2}, {sT0}")
w1_base()
dma_loop("w1a", sW1, vD1, W1R, sT2, 7 * 9216, sT3, 5, 21)
w2_base()
W2_FIRST = 15
dma_loop("w2a", sW2, vD2, W2R, sT2, 7 * 1152, sT3, 5, W2_FIRST)
LAB("A_s2_done")
I("s_waitcnt vmcnt(7)")
I(f"s_cmp_lg_u32 {sW}, 0")
I("s_cbranch_scc1 A_qready")
C("aux: all 256 workgroups have cleared (needed before the first cross-die hand-off)")
I(f"s_mov_b32 {sT0}, 0")
LAB("FLAG2")
I(f"s_load_dwordx8 {sFlag}, {sDbgP}, {sT0} glc")
I(f"s_sub_u32 {sSpin}, {sSpin}, 1")
I("s_cbranch_scc1 L_END")
I("s_waitcnt lgkmcnt(0)")
I(f"s_and_b64 {sFlag[0:2]}, {sFlag[0:2]}, {sFlag[2:4]}")
I(f"s_and_b64 {sFlag[4:6]}, {sFlag[4:6]}, {sFlag[6:8]}")
I(f"s_and_b64 {sFlag[0:2]}, {sFlag[0:2]}, {sFlag[4:6]}")
I(f"s_and_b32 {sT1}, {sFlag[0]}, {sFlag[1]}")
I(f"s_and_b32 {sT1}, {sT1}, 0x80808080")
I(f"s_cmp_lg_u32 {sT1}, 0x80808080")
I("s_cbranch_scc1 FLAG2")
I(f"s_add_u32 {sT0}, {sT0}, 32")
I(f"s_cmp_lt_u32 {sT0}, 256")
I("s_cbranch_scc1 FLAG2")
LAB("A_qready")
stamp("q_got")
I("s_waitcnt lgkmcnt(0)")
I("s_barrier")
I(f"s_cmp_eq_u32 {sW}, 0")
I("s_cbranch_scc1 A_aux")
for i in range(4):
    I(f"ds_read_b128 {vA[4*i:4*i+4]}, {vQBr} offset:{QB + 64*i}")
I(f"s_cmp_lg_u32 {sLayer}, 0")
I("s_cbranch_scc1 A_havev")
for i in range(4):
    for h in range(2):
        I(f"ds_read_b64_tr_b16 {vVt[4*i+2*h:4*i+2*h+2]}, {vVtr} offset:{8192*i + 1024*h}")
LAB("A_havev")
I("s_waitcnt lgkmcnt(0)")
for i in range(4):
    I(f"v_mfma_f32_16x16x32_bf16 {vE[0:4]}, {vK[4*i:4*i+4]}, {vA[4*i:4*i+4]}, {vE[0:4] if i else 0}")
I(f"s_mov_b64 exec, {m2}")
I(f"v_max3_f32 {vT0}, {vE[0]}, {vE[1]}, {vE[2]}")
I(f"v_max_f32 {vT0}, {vT0}, {vE[3]}")
I(f"ds_max_f32 {vMXw}, {vT0}")
I("s_waitcnt lgkmcnt(0)")
I("s_barrier")
I(f"ds_read_b128 {vE[4:8]}, {vMXr}")
I("s_waitcnt lgkmcnt(0)")
I(f"v_max3_f32 {vT0}, {vE[4]}, {vE[5]}, {vE[6]}")
I(f"v_max_f32 {vT0}, {vT0}, {vE[7]}")
for e in range(4):
    I(f"v_sub_f32 {vE[e]}, {vE[e]}, {vT0}")
for e in range(4):
    I(f"v_exp_f32 {vE[e]}, {vE[e]}")
I(f"v_cvt_pk_bf16_f32 {vE[0]}, {vE[0]}, {vE[1]}")
I(f"v_cvt_pk_bf16_f32 {vE[1]}, {vE[2]}, {vE[3]}")
I(f"ds_write_b64 {vPBw}, {vE[0:2]} offset:{PB}")
I("s_mov_b64 exec, -1")
I("s_waitcnt lgkmcnt(0)")
I("s_barrier")
for i in range(4):
    I(f"ds_read_b128 {vA[4*i:4*i+4]}, {vQBr} offset:{PB + 64*i}")
for i in range(4):
    I(f"s_waitcnt lgkmcnt({3-i})")
    I(f"v_mfma_f32_16x16x32_bf16 {vE[0:4]}, {vVt[4*i:4*i+4]}, {vA[4*i:4*i+4]}, {vE[0:4] if i else 0}")
I(f"v_cvt_pk_bf16_f32 {vE[0]}, {vE[0]}, {vE[1]}")
I(f"v_cvt_pk_bf16_f32 {vE[1]}, {vE[2]}, {vE[3]}")
publish(f"buffer_store_dwordx2 {vE[0:2]}, {vOPs}, {sWS}, {sLB} offen", m2)
I("s_branch A_done")
LAB("A_aux")
I("s_barrier")
I(f"ds_read_b128 {vE[4:8]}, {vMXr}")
I("s_waitcnt lgkmcnt(0)")
I(f"v_max3_f32 {vT0}, {vE[4]}, {vE[5]}, {vE[6]}")
I(f"v_max_f32 {vE[4]}, {vT0}, {vE[7]}")
I("s_barrier")
for i in range(4):
    I(f"ds_read_b128 {vA[4*i:4*i+4]}, {vQBr} offset:{PB + 64*i}")
for i in range(4):
    I(f"s_waitcnt lgkmcnt({3-i})")
    I(f"v_mfma_f32_16x16x32_bf16 {vE[0:4]}, {vVt[0:4]}, {vA[4*i:4*i+4]}, {vE[0:4] if i else 0}")
I(f"v_mov_b32 {vE[5]}, {vE[0]}")
publish(f"buffer_store_dwordx2 {vE[4:6]}, {vMLs}, {sWS}, {sLB} offen", "3")
LAB("A_done")
I(f"v_add_u32 {vMXw}, 32, {vMXw}")
I(f"v_add_u32 {vMXr}, 32, {vMXr}")
stamp("o_pub")
C("======== [C] output projection (workgroups j < 16)")
I(f"s_cmp_lt_u32 {sJ}, 16")
I("s_cbranch_scc0 O_skip")
I(f"s_cmp_lg_u32 {sLayer}, 0")
I("s_cbranch_scc1 O_havew")
I("s_waitcnt vmcnt(0)")
I("s_barrier")
I(f"s_cmp_eq_u32 {sW}, 0")
I("s_cbranch_scc1 O_havew")
for t in range(5):
    for h in range(2):
        I(f"ds_read_b64_tr_b16 {vW2[4*t+2*h:4*t+2*h+2]}, {vW2tr} offset:{4*h*144 + 32*t}")
LAB("O_havew")
I(f"s_cmp_eq_u32 {sW}, 0")
I("s_cbranch_scc1 O_red")
LAB("OG")
I(f"buffer_load_dwordx4 {vE[0:4]}, {vOG}, {sWS}, {sLB} offen sc1")
I(f"buffer_load_dwordx4 {vE[4:8]}, {vMLg}, {sWS}, {sLB} offen sc1")
I(f"buffer_load_dwordx4 {vE[8:12]}, {vMLg}, {sWS}, {sLB} offen offset:16 sc1")
I("s_waitcnt vmcnt(0) lgkmcnt(0)")
I(f"v_max3_u32 {vT0}, {vE[0]}, {vE[1]}, {vE[2]}")
I(f"v_max3_u32 {vT1}, {vE[3]}, {vE[5]}, {vE[7]}")
I(f"v_max3_u32 {vT0}, {vT0}, {vE[9]}, {vE[11]}")
I(f"v_max_u32 {vT0}, {vT0}, {vT1}")
I(f"v_cmp_eq_u32 vcc, -1, {vT0}")
poll_fail("OG")
stamp("o_got")
for t in range(5):
    I(f"v_mfma_f32_16x16x32_bf16 {vA[4*t:4*t+4]}, {vE[0:4]}, {vW2[4*t:4*t+4]}, 0")
C("split weights: w_s = 2^(M_s - M) / sum_s l_s 2^(M_s - M)")
I(f"v_max3_f32 {vT0}, {vE[4]}, {vE[6]}, {vE[8]}")
I(f"v_max_f32 {vT0}, {vT0}, {vE[10]}")
I(f"v_mov_b32 {vT1}, {vT0}")
I(f"v_permlane16_swap_b32 {vT0}, {vT1}")
I(f"v_max_f32 {vT0}, {vT0}, {vT1}")
for e in range(4):
    I(f"v_sub_f32 {vE[4+2*e]}, {vE[4+2*e]}, {vT0}")
for e in range(4):
    I(f"v_exp_f32 {vE[4+2*e]}, {vE[4+2*e]}")
I(f"v_mul_f32 {vT0}, {vE[4]}, {vE[5]}")
I(f"v_fmac_f32 {vT0}, {vE[6]}, {vE[7]}")
I(f"v_fmac_f32 {vT0}, {vE[8]}, {vE[9]}")
I(f"v_fmac_f32 {vT0}, {vE[10]}, {vE[11]}")
I(f"v_mov_b32 {vT1}, {vT0}")
I(f"v_permlane16_swap_b32 {vT0}, {vT1}")
I(f"v_add_f32 {vT0}, {vT0}, {vT1}")
I(f"v_rcp_f32 {vT0}, {vT0}")
I(f"v_mul_f32 {vE[5]}, {vE[6]}, {vT0}")
I(f"v_mul_f32 {vE[4]}, {vE[4]}, {vT0}")
I(f"v_mul_f32 {vE[6]}, {vE[8]}, {vT0}")
I(f"v_mul_f32 {vE[7]}, {vE[10]}, {vT0}")
for t in range(5):
    I(f"v_pk_mul_f32 {vA[4*t:4*t+2]}, {vA[4*t:4*t+2]}, {vE[4:6]}")
    I(f"v_pk_fma_f32 {vA[4*t:4*t+2]}, {vA[4*t+2:4*t+4]}, {vE[6:8]}, {vA[4*t:4*t+2]}")
    I(f"v_add_f32 {vA[4*t]}, {vA[4*t]}, {vA[4*t+1]}")
    I(f"ds_write_b32 {vREDw}, {vA[4*t]} offset:{1280*t}")
I(f"s_cmp_lg_u32 {sLayer}, 0")
I("s_cbranch_scc1 O_red")
C("first layer: stage 3 loads (w1 slice)")
w1_base()
dma_loop("w1b", sW1, vD1, W1R, sT2, 7 * 9216, sR, 8, 21)
LAB("O_red")
final_reduce("O", 0)
stamp("x1_pub")
I("s_waitcnt vmcnt(1)")
I("s_branch X1G")
LAB("O_skip")
I(f"s_cmp_lg_u32 {sLayer}, 0")
I("s_cbranch_scc1 H1W")
C("first layer: rest of the w2 block")
w2_base()
I(f"s_add_u32 {sT3}, {sW}, {W2_FIRST}")
dma_loop("w2b", sW2, vD2, W2R, sT2, 7 * 1152, sT3, 9, 42)
hint_wait("H1W", 0)
C("======== [D] x1 slice")
xgather("X1G")
I(f"ds_write_b16 {vXBw}, {vE[0]} offset:{XB}")
I(f"v_lshlrev_b32 {vXres}, 16, {vE[0]}")
I(f"v_lshlrev_b32 {vT0}, 16, {vB2}")
I(f"v_add_f32 {vXres}, {vXres}, {vT0}")
stamp("x1_got")
C("======== [E] first MLP matmul (K-slice partials)")
gemv1("h", vW1, W1R, 5, vHPs, mH, 128)
stamp("h_pub")
C("======== [F] gelu + second MLP matmul (workgroups j >= 16)")
I(f"s_cmp_lt_u32 {sJ}, 16")
I("s_cbranch_scc1 M_skip")
I(f"s_cmp_lg_u32 {sLayer}, 0")
I("s_cbranch_scc1 M_havew")
for t in range(5):
    for h in range(2):
        I(f"ds_read_b64_tr_b16 {vW2[4*t+2*h:4*t+2*h+2]}, {vW2tr} offset:{4*h*144 + 32*t}")
I(f"v_lshlrev_b32 {vB1}, 16, {vB1}")
LAB("M_havew")
haddrs = [(vHG0, 0), (vHG0, 2304), (vHG1, 0), (vHG1, 2304)]
LAB("MG_0r")
gather4("MG", haddrs, vHSg, vHCS, [0, 2304, 4608, 6912], vCSh)
gather4_finish("MG", haddrs, vHSg, vCSh)
stamp("h_got")
c1 = -2 * math.sqrt(2 / math.pi) * math.log2(math.e)
I(f"v_fma_f32 {vE[0]}, {vE[0]}, {vT1}, {vB1}")
I(f"v_mov_b32 {vT2}, {f32(c1)}")
I(f"v_mul_f32 {vT0}, {vE[0]}, {vE[0]}")
I(f"v_fmamk_f32 {vT0}, {vT0}, {f32(c1 * 0.044715)}, {vT2}")
I(f"v_mul_f32 {vT0}, {vT0}, {vE[0]}")
I(f"v_exp_f32 {vT0}, {vT0}")
I(f"v_add_f32 {vT0}, 1.0, {vT0}")
I(f"v_rcp_f32 {vT0}, {vT0}")
I(f"v_mul_f32 {vE[0]}, {vE[0]}, {vT0}")
I(f"v_cvt_pk_bf16_f32 {vE[0]}, {vE[0]}, {vE[0]}")
I(f"ds_write_b16 {vHBw}, {vE[0]}")
I(f"ds_read_b128 {vE[4:8]}, {vHBr}")
I("s_waitcnt lgkmcnt(0)")
for t in range(5):
    I(f"v_mfma_f32_16x16x32_bf16 {vA[4*t:4*t+4]}, {vE[4:8]}, {vW2[4*t:4*t+4]}, 0")
I("s_mov_b64 exec, 0xffff")
for t in range(5):
    I(f"ds_write2st64_b32 {vREDw}, {vA[4*t]}, {vA[4*t+1]} offset0:{5*t} offset1:{5*t+25}")
I("s_mov_b64 exec, -1")
final_reduce("M", 1024)
stamp("x2_pub")
LAB("M_skip")
C("======== [G] x2 slice")
I(f"s_cmp_eq_u32 {sLayer}, 0")
I("s_cbranch_scc1 X2_go")
I(f"s_and_b32 {sT0}, s2, 63")
I("s_cbranch_scc1 L_FIN")
LAB("X2_go")
I(f"s_cmp_lt_u32 {sJ}, 16")
I("s_cbranch_scc1 H2W")
I("s_waitcnt vmcnt(1)")
I("s_branch X2G")
hint_wait("H2W", 1024)
xgather("X2G")
I(f"s_cmp_lg_u32 {sLayer}, 0")
I("s_cbranch_scc1 L_OUT")
I(f"ds_write_b16 {vXBw}, {vE[0]} offset:{XB}")
I(f"v_lshlrev_b32 {vXres}, 16, {vE[0]}")
stamp("x2_got")
I(f"s_mov_b32 {sLayer}, 1")
I(f"s_add_u32 {sLB}, {sLB}, {LS}")
I(f"s_and_b64 {mQ}, {mQ}, {m2}")
I(f"s_and_b64 {mH}, {mH}, {m2}")
I("s_branch L_LOOP")
LAB("L_OUT")
I(f"buffer_store_short {vE[0]}, {vXi}, {sOUT}, 0 offen")
stamp("out")
LAB("L_FIN")
if PROF:
    I(f"s_mul_i32 {sT0}, s2, 9")
    I(f"s_add_u32 {sT0}, {sT0}, {sW}")
    I(f"s_lshl_b32 {sT0}, {sT0}, 8")
    I(f"s_add_u32 {sT0}, {sT0}, {PROFB}")
    I(f"v_lshlrev_b32 {vT0}, 2, {vL}")
    I(f"v_writelane_b32 {vStamp}, {sSpin}, 63")
    I(f"buffer_store_dword {vStamp}, {vT0}, {sWS}, {sT0} offen")
LAB("L_END")
I("s_endpgm")
for r, loop in retries:
    LAB(r)
    I(f"s_sub_u32 {sSpin}, {sSpin}, 1")
    I(f"s_cbranch_scc0 {loop}")
    I("s_endpgm")

LAB("L_CODE_END")
body = fix_hazards(L)
hdr = open(f"cdna_kernels/{NAME}.s.ref").read().split("\n")
top = [l for l in hdr if l.startswith(";") and "@launch" not in l and "Override" not in l and "grid=ceil" not in l]
nv = (va.next + 7) // 8 * 8
out = top + [f"; @launch grid=(256,1,1) block=(576,1,1) lds={LDS_BYTES}",
  '.amdgcn_target "amdgcn-amd-amdhsa--gfx950"', ".text", f".globl {NAME}_kernel", ".p2align 8",
  f".type {NAME}_kernel,@function", f"{NAME}_kernel:"] + body + [
  "    .fill 64, 4, 0xbf810000",
  '.section .rodata,"a"', ".p2align 6", f".amdhsa_kernel {NAME}_kernel",
  f"  .amdhsa_next_free_vgpr {nv}", "  .amdhsa_next_free_sgpr 102", f"  .amdhsa_accum_offset {nv}",
  "  .amdhsa_group_segment_fixed_size 0", "  .amdhsa_kernarg_size 104", "  .amdhsa_user_sgpr_count 2",
  "  .amdhsa_user_sgpr_kernarg_segment_ptr 1", "  .amdhsa_system_sgpr_workgroup_id_x 1", ".end_amdhsa_kernel", ""]
dst = [a for a in sys.argv[1:] if not a.startswith("--")]
dst = dst[0] if dst else f"cdna_kernels/{NAME}.s"
open(dst, "w").write("\n".join(out))
if PROF:
    open(dst + ".stamps", "w").write("\n".join(stamps))
print("wrote", dst, "vgprs", va.next, "sgprs", sa.next, "lines", len(out))
```
